```python
import torch

def _softmax(x, axis=-1):
    return torch.softmax(x, dim=axis)

def _gelu(x):
    return torch.nn.functional.gelu(x, approximate='tanh')

def _silu(x):
    return torch.nn.functional.silu(x)

def _sigmoid(x):
    return torch.sigmoid(x)

def _layernorm(x, axis=-1, eps=1e-05):
    m = x.mean(dim=axis, keepdim=True)
    v = x.var(dim=axis, keepdim=True, unbiased=False)
    return (x - m) / torch.sqrt(v + eps)

def _scatter_add(tgt, idx, src, axis=0):
    return tgt.clone().index_add_(axis, idx, src)

def _segment_sum(src, seg, n):
    out = torch.zeros((n,) + src.shape[1:], dtype=src.dtype)
    return out.index_add_(0, seg, src)

def _pad(x, pw):
    flat = tuple((v for pair in reversed(pw) for v in pair))
    return torch.nn.functional.pad(x, flat)
kernel_name = 'adaLN_cond__ssm_conv_h3__geglu_ffn__prompt'

def setup_inputs():

    _w = lambda a: (lambda t: t.to(torch.bfloat16) if t.is_floating_point() else t)(torch.as_tensor(a))

    def _A_setup():
        B, S, D = (1, 2048, 448)
        ks = 4
        return {'q': _w((lambda *s: torch.randn(*s, dtype=torch.bfloat16) * 0.05)(B, S, D)), 'k': _w((lambda *s: torch.randn(*s, dtype=torch.bfloat16) * 0.8)(B, S, D)), 'v': _w((lambda *s: torch.randn(*s, dtype=torch.bfloat16) * 0.8)(B, S, D)), 'shift_k': _w((lambda *s: torch.randn(*s, dtype=torch.bfloat16) * 0.8)(D, ks) * 0.5), 'ssm_k': _w((lambda *s: torch.randn(*s, dtype=torch.bfloat16) * 0.8)(D, S) * (1.0 / S ** 0.5)), 'ssm_D': _w((lambda *s: torch.randn(*s, dtype=torch.bfloat16) * 0.8)(D))}
    _A_in = _A_setup()

    def _B_setup():
        B, S, D, F = (1, 2048, 448, 1792)
        return {'x': _w((lambda *s: torch.randn(*s, dtype=torch.bfloat16) * 0.05)(B, S, D)), 'w_gate': _w((lambda *s: torch.randn(*s, dtype=torch.bfloat16) * 0.05)(D, F)), 'w_up': _w((lambda *s: torch.randn(*s, dtype=torch.bfloat16) * 0.05)(D, F)), 'w_down': _w((lambda *s: torch.randn(*s, dtype=torch.bfloat16) * 0.05)(F, D))}
    _B_in = _B_setup()
    return {'A_q': _A_in['q'], 'A_k': _A_in['k'], 'A_v': _A_in['v'], 'A_shift_k': _A_in['shift_k'], 'A_ssm_k': _A_in['ssm_k'], 'A_ssm_D': _A_in['ssm_D'], 'B_x': _B_in['x'], 'B_w_gate': _B_in['w_gate'], 'B_w_up': _B_in['w_up'], 'B_w_down': _B_in['w_down'], 'c': _w((lambda *s: torch.randn(*s, dtype=torch.bfloat16) * 0.1)(1, 448) * 8.0), 'w_mod': _w((lambda *s: torch.randn(*s, dtype=torch.bfloat16) * 0.1)(448, 6 * 448) * 448 ** (-0.5) * 8.0)}

def reference(A_q, A_k, A_v, A_shift_k, A_ssm_k, A_ssm_D, B_x, B_w_gate, B_w_up, B_w_down, c, w_mod):

    def _A_ref(q, k, v, shift_k, ssm_k, ssm_D):
        B, S, D = q.shape
        ks = shift_k.shape[-1]
        k_pad = _pad(k, ((0, 0), (ks - 1, 0), (0, 0)))
        k_shift = torch.zeros_like(k)
        for t in range(ks):
            k_shift = k_shift + k_pad[:, t:t + S, :] * shift_k[:, ks - 1 - t][None, None, :]
        kv = k_shift * v
        L = 2 * S
        kv_pad = _pad(kv, ((0, 0), (0, S), (0, 0)))
        kf_pad = _pad(ssm_k, ((0, 0), (0, S)))
        kv_f = (lambda x, axes=(-2, -1): torch.fft.rfft2(x.float(), dim=axes))(kv_pad[:, None, :, :], axes=(1, 2))
        kf_f = (lambda x, axes=(-2, -1): torch.fft.rfft2(x.float(), dim=axes))(kf_pad[:, None, :], axes=(1, 2))
        kf_f = (lambda x, *d: x.permute(*d))(kf_f, 1, 2, 0)
        y_f = kv_f * kf_f[None, :, :, :]
        y = (lambda x, s, axes=(-2, -1): torch.fft.irfft2(x, s=s, dim=axes).to(torch.bfloat16))(y_f, (1, L), axes=(1, 2))[:, 0, :S, :]
        y = y + kv * ssm_D[None, None, :]
        return q * y

    def _B_ref(x, w_gate, w_up, w_down):
        return _gelu(x @ w_gate) * (x @ w_up) @ w_down
    x = A_q
    mod = (_silu(c) @ w_mod).reshape(c.shape[0], 6, 1, -1)
    sa, ca, ga, sb, cb, gb = (mod[:, 0].clone(), mod[:, 1].clone(), mod[:, 2].clone(), mod[:, 3].clone(), mod[:, 4].clone(), mod[:, 5].clone())
    h = _layernorm(x, axis=-1) * (1 + ca) + sa
    x = x + ga * _A_ref(h, A_k, A_v, A_shift_k, A_ssm_k, A_ssm_D)
    h = _layernorm(x, axis=-1) * (1 + cb) + sb
    x = x + gb * _B_ref(h, B_w_gate, B_w_up, B_w_down)
    return x
```

```python
import re

TRANS = ("v_exp_f32", "v_log_f32", "v_rcp_f32", "v_rsq_f32", "v_sqrt_f32", "v_sin_f32", "v_cos_f32")

def regs_of(tok):
    tok = tok.strip()
    tok = tok.lstrip('-')
    if tok.startswith('abs(') or tok.startswith('|'):
        tok = tok.replace('abs(', '').replace(')', '').replace('|', '')
    m = re.fullmatch(r'([vsa])(\d+)', tok)
    if m:
        return {(m.group(1), int(m.group(2)))}
    m = re.fullmatch(r'([vsa])\[(\d+):(\d+)\]', tok)
    if m:
        return {(m.group(1), i) for i in range(int(m.group(2)), int(m.group(3)) + 1)}
    if tok == 'vcc':
        return {('s', 106), ('s', 107)}
    if tok == 'm0':
        return {('s', 124)}
    if tok == 'exec':
        return {('s', 126), ('s', 127)}
    return set()

class Ins:
    __slots__ = ("text", "op", "wr", "rd", "kind", "ws", "srcc", "srcab", "dpp", "storedata", "passes")

def analyze(text):
    t = text.split(';')[0].strip()
    ins = Ins()
    ins.text = text
    parts = t.split(None, 1)
    op = parts[0]
    ins.op = op
    rest = parts[1] if len(parts) > 1 else ""
    ops = [o.strip() for o in re.split(r',(?![^\[]*\])', rest)] if rest else []
    toks = []
    mods = []
    for o in ops:
        sp = o.split()
        if sp:
            toks.append(sp[0])
            mods += sp[1:]
    ins.wr = set(); ins.rd = set(); ins.srcc = set(); ins.srcab = set(); ins.storedata = set()
    ins.dpp = ('_dpp' in op) or any(m.startswith(('row_', 'quad_perm', 'wave_')) for m in mods)
    ins.ws = 1
    ins.passes = 0
    if op == 's_nop':
        ins.kind = 'nop'; ins.ws = int(toks[0], 0) + 1
        return ins
    if op.startswith('v_mfma'):
        ins.kind = 'mfma'
        ins.wr = regs_of(toks[0]); ins.srcab = regs_of(toks[1]) | regs_of(toks[2]); ins.srcc = regs_of(toks[3])
        ins.rd = ins.srcab | ins.srcc
        ins.passes = 8 if '32x32' in op else 4
        return ins
    if op.startswith(('buffer_store', 'global_store', 'buffer_atomic', 'global_atomic')):
        ins.kind = 'vmem'
        for k in toks: ins.rd |= regs_of(k)
        if op.startswith('buffer_'):
            ins.storedata = regs_of(toks[0])
        else:
            ins.storedata = regs_of(toks[1])
        if not ('x3' in op or 'x4' in op):
            ins.storedata = set()
        return ins
    if op.startswith(('buffer_load', 'global_load')):
        ins.kind = 'vmem'
        if 'lds' in mods or '_lds_' in op:
            for k in toks: ins.rd |= regs_of(k)
            ins.rd |= {('s', 124)}
            ins.kind = 'vmem_lds'
        else:
            ins.wr = regs_of(toks[0])
            for k in toks[1:]: ins.rd |= regs_of(k)
        return ins
    if op.startswith('ds_'):
        ins.kind = 'ds'
        if op.startswith(('ds_read', 'ds_bpermute', 'ds_permute', 'ds_swizzle')):
            ins.wr = regs_of(toks[0])
            for k in toks[1:]: ins.rd |= regs_of(k)
        else:
            for k in toks: ins.rd |= regs_of(k)
        return ins
    if op.startswith('s_'):
        ins.kind = 'salu'
        if op.startswith(('s_cmp', 's_waitcnt', 's_barrier', 's_branch', 's_cbranch', 's_endpgm', 's_setprio', 's_sleep')):
            for k in toks: ins.rd |= regs_of(k)
        else:
            if toks: ins.wr = regs_of(toks[0])
            for k in toks[1:]: ins.rd |= regs_of(k)
            if 'saveexec' in op: ins.wr |= {('s', 126), ('s', 127)}
        return ins
    if op.startswith('v_'):
        ins.kind = 'valu'
        if op.startswith(TRANS): ins.kind = 'trans'
        if op.startswith('v_dot2'): ins.kind = 'dot'
        if op.startswith('v_permlane') and 'swap' in op:
            ins.kind = 'permswap'
            ins.wr = regs_of(toks[0]) | regs_of(toks[1]); ins.rd = set(ins.wr)
            return ins
        ins.wr = regs_of(toks[0])
        start = 1
        if op.startswith(('v_add_co', 'v_sub_co', 'v_addc_co', 'v_subb_co', 'v_div_scale', 'v_mad_u64')):
            ins.wr |= regs_of(toks[1]); start = 2
        for k in toks[start:]: ins.rd |= regs_of(k)
        if op.startswith(('v_fmac', 'v_dot2c', 'v_pk_fmac')) or ins.dpp:
            ins.rd |= ins.wr
        if op.startswith('v_cndmask') and len(toks) == 3:
            ins.rd |= {('s', 106), ('s', 107)}
        return ins
    ins.kind = 'other'
    return ins

def is_valu(i): return i.kind in ('valu', 'trans', 'dot', 'permswap')

def need(prev, cur):
    n = 0
    vw = {r for r in prev.wr if r[0] in 'va'}
    sw = {r for r in prev.wr if r[0] == 's'}
    if is_valu(prev):
        if cur.dpp and (vw & cur.rd): n = max(n, 2)
        if prev.kind == 'trans' and is_valu(cur) and cur.kind != 'trans' and (vw & cur.rd): n = max(n, 1)
        if prev.kind == 'trans' and cur.kind == 'trans' and (vw & cur.rd): n = max(n, 1)
        if sw:
            if is_valu(cur) and (sw & cur.rd): n = max(n, 4 if 'lane' in cur.op else 2)
            if cur.kind in ('vmem', 'vmem_lds') and (sw & cur.rd): n = max(n, 5)
            if cur.kind == 'salu' and (sw & cur.rd): n = max(n, 1)
        if cur.kind == 'mfma' and (vw & cur.rd): n = max(n, 2)
        if cur.op.startswith(('v_readfirstlane', 'v_readlane')) and (vw & cur.rd): n = max(n, 1)
        if cur.kind == 'permswap' and (vw & cur.rd): n = max(n, 2)
        if prev.kind == 'dot':
            if cur.kind == 'dot' and cur.op == prev.op:
                pass
            if (vw & (cur.rd | cur.wr)) and not (cur.kind == 'dot' and cur.op == prev.op):
                n = max(n, 3)
        if ('sdwa' in prev.op) and is_valu(cur) and (vw & cur.rd): n = max(n, 1)
    if prev.kind == 'mfma':
        big = 12 if prev.passes == 8 else 8
        if cur.kind == 'mfma':
            if vw & cur.srcab: n = max(n, big)
            if vw & cur.srcc:
                if not (cur.srcc == vw and cur.passes == prev.passes):
                    n = max(n, big - 2)
            if (vw & cur.wr) and not (cur.wr == vw): n = max(n, big)
        else:
            if vw & (cur.rd | cur.wr): n = max(n, big)
        if is_valu(cur) and (prev.srcc & cur.wr): n = max(n, 7 if prev.passes == 8 else 3)
    if prev.storedata and (prev.storedata & cur.wr):
        n = max(n, 2)
    if prev.kind == 'salu' and (('s', 124) in prev.wr) and cur.kind == 'vmem_lds': n = max(n, 1)
    return n

class Asm:
    def __init__(self):
        self.lines = []
        self.hist = []
    def raw(self, text):
        self.lines.append(text)
    def label(self, name):
        self.lines.append(name + ":")
        self.hist = []
    def flush(self, n=12):
        self.I(f"s_nop {min(n,15)}")
    def I(self, text):
        ins = analyze(text)
        dist = 0
        pad = 0
        for p in reversed(self.hist):
            req = need(p, ins)
            if req > dist:
                pad = max(pad, req - dist)
            dist += p.ws
            if dist > 20: break
        while pad > 0:
            k = min(pad, 16)
            nop = analyze(f"s_nop {k-1}")
            self.lines.append(f"    s_nop {k-1}")
            self.hist.append(nop)
            pad -= k
        self.lines.append("    " + text)
        self.hist.append(ins)
        if len(self.hist) > 40: self.hist = self.hist[-40:]
    def text(self):
        return "\n".join(self.lines) + "\n"

class Regs:
    def __init__(self, kind, start, limit):
        self.kind = kind; self.next = start; self.limit = limit; self.hi = start
    def alloc(self, n=1, align=1):
        if n > 1 and align < 2: align = 2
        b = (self.next + align - 1) // align * align
        self.next = b + n
        assert self.next <= self.limit, f"out of {self.kind} regs"
        self.hi = max(self.hi, self.next)
        return b
    def mark(self): return self.next
    def release(self, m): self.next = m

def vr(b, n=1):
    return f"v{b}" if n == 1 else f"v[{b}:{b+n-1}]"
def sr(b, n=1):
    return f"s{b}" if n == 1 else f"s[{b}:{b+n-1}]"
```

```python
from asmlib import *
from gen import srd, kd, khead, unpack, rnd2, MOD, MOD_SZ, URT, XXT, X2T, WP, WP_SZ, CS, CS_SZ, WDP, WDP_SZ, ACT, ACT_SZ, X2T_SZ, XSZ

K2_ST = 448 * 256
K2_LDS = K2_ST + 2048

def gen_k2(a):
    khead(a, "k2_kernel")
    a.I("s_cmp_ge_u32 s2, 224")
    a.I("s_cbranch_scc1 K2_END")
    a.I("s_load_dwordx2 s[16:17], s[0:1], 112")
    a.I("s_mov_b32 s50, 0x3f803f80")
    a.I("v_lshrrev_b32 v1, 6, v0")
    a.I("v_readfirstlane_b32 s3, v1")
    a.I("s_and_b32 s44, s2, 7")
    a.I("s_lshr_b32 s45, s2, 3")
    a.I("s_lshr_b32 s46, s44, 1")
    a.I("s_lshl_b32 s46, s46, 2")
    a.I("s_and_b32 s47, s45, 3")
    a.I("s_add_u32 s46, s46, s47")
    a.I("s_and_b32 s47, s44, 1")
    a.I("s_mul_i32 s47, s47, 7")
    a.I("s_lshr_b32 s48, s45, 2")
    a.I("s_add_u32 s47, s47, s48")
    a.I("s_lshl_b32 s47, s47, 3")
    a.I("s_add_u32 s47, s47, s3")
    a.I("s_waitcnt lgkmcnt(0)")
    srd(a, 20, 16, X2T, X2T_SZ)
    srd(a, 24, 16, WP, WP_SZ)
    srd(a, 28, 16, CS, CS_SZ)
    srd(a, 32, 16, ACT, ACT_SZ)
    V = Regs('v', 1, 256)
    vlane = V.alloc(); vt = V.alloc(); vt2 = V.alloc(); vd = V.alloc(); vw = V.alloc(); vh = V.alloc(); vn = V.alloc()
    a.I(f"v_and_b32 v{vlane}, 63, v0")
    a.I(f"v_lshrrev_b32 v{vh}, 5, v{vlane}")
    a.I(f"v_and_b32 v{vn}, 31, v{vlane}")
    a.I(f"v_lshrrev_b32 v{vt}, 4, v{vlane}")
    a.I(f"v_lshlrev_b32 v{vt2}, 2, v{vt}")
    a.I(f"v_and_b32 v{vd}, 15, v{vlane}")
    a.I(f"v_xor_b32 v{vd}, v{vd}, v{vt2}")
    a.I(f"v_lshlrev_b32 v{vd}, 4, v{vd}")
    a.I(f"v_lshl_add_u32 v{vd}, v{vt}, 12, v{vd}")
    a.I("s_lshl_b32 s48, s46, 8")
    a.I(f"v_add_u32 v{vd}, s48, v{vd}")
    a.I(f"v_lshlrev_b32 v{vw}, 4, v{vlane}")
    W = V.alloc(28 * 4, 4)
    CSR = W
    a.I("s_lshl_b32 s52, s3, 10")
    a.I("s_lshl_b32 s53, s3, 14")
    a.I("s_mul_i32 s54, s47, 28672")
    def dma(i):
        a.I("s_mov_b32 m0, s52")
        a.I(f"buffer_load_dwordx4 v{vd}, s[20:23], s53 offen lds")
        a.I("s_add_u32 s52, s52, 8192")
        a.I("s_add_u32 s53, s53, 131072")
    def wld(t):
        a.I(f"buffer_load_dwordx4 {vr(W+4*t,4)}, v{vw}, s[24:27], s54 offen offset:{1024*(t&3)}")
        if t & 3 == 3: a.I("s_add_u32 s54, s54, 4096")
    for i in range(7): dma(i)
    for t in range(14): wld(t)
    for i in range(7, 14): dma(i)
    for t in range(14, 28): wld(t)
    vcs = V.alloc()
    a.I(f"v_lshlrev_b32 v{vcs}, 7, v{vh}")
    a.I("s_lshl_b32 s55, s47, 8")
    TA = V.alloc(4); TB = V.alloc(4)
    vr_ = V.alloc(); vbase = V.alloc()
    a.I(f"v_bfe_u32 v{vr_}, v{vlane}, 2, 2")
    a.I(f"v_lshl_add_u32 v{vbase}, v{vh}, 3, v{vr_}")
    a.I(f"v_lshlrev_b32 v{vbase}, 8, v{vbase}")
    a.I(f"v_bfe_u32 v{vt}, v{vlane}, 4, 1")
    a.I(f"v_lshl_add_u32 v{vbase}, v{vt}, 5, v{vbase}")
    a.I(f"v_and_b32 v{vt}, 3, v{vlane}")
    a.I(f"v_lshl_add_u32 v{vbase}, v{vt}, 3, v{vbase}")
    for sl in range(4):
        a.I(f"s_add_u32 s48, s3, {sl}")
        a.I("s_and_b32 s48, s48, 3")
        a.I(f"v_xor_b32 v{vt}, s48, v{vr_}")
        a.I(f"v_lshl_add_u32 v{TA+sl}, v{vt}, 6, v{vbase}")
        a.I(f"v_add_u32 v{TB+sl}, 0x10000, v{TA+sl}")
    AC = V.alloc(64, 4)
    B = V.alloc(32, 4)
    SQ = V.alloc(2, 2)
    for j in range(64): a.I(f"v_mov_b32 v{AC+j}, 0")
    a.I(f"v_mov_b32 v{SQ}, 0"); a.I(f"v_mov_b32 v{SQ+1}, 0")
    def trld(t):
        b = B + 16 * (t & 1)
        for sl in range(4):
            ad = (TA if t < 16 else TB) + sl
            off = 4096 * (t if t < 16 else t - 16)
            a.I(f"ds_read_b64_tr_b16 {vr(b+4*sl,2)}, v{ad} offset:{off}")
            a.I(f"ds_read_b64_tr_b16 {vr(b+4*sl+2,2)}, v{ad} offset:{off+1024}")
    a.I("s_waitcnt vmcnt(35)")
    a.I("s_barrier")
    trld(0)
    for t in range(28):
        if t == 13:
            a.I("s_waitcnt vmcnt(14)")
            a.I("s_barrier")
        if t == 20:
            for j in range(8):
                a.I(f"buffer_load_dwordx4 {vr(CSR+4*j,4)}, v{vcs}, s[28:31], s55 offen offset:{16*j}")
        if t + 1 < 28:
            trld(t + 1)
        if t < 14:
            a.I(f"s_waitcnt vmcnt({(13-t) + 7 + 14 if t < 13 else 14}) lgkmcnt({8 if t+1<28 else 0})")
        else:
            a.I(f"s_waitcnt vmcnt({(27-t) + (8 if t >= 20 else 0)}) lgkmcnt({8 if t+1<28 else 0})")
        b = B + 16 * (t & 1)
        for sl in range(4):
            a.I(f"v_mfma_f32_32x32x16_bf16 {vr(AC+16*sl,16)}, {vr(W+4*t,4)}, {vr(b+4*sl,4)}, {vr(AC+16*sl,16)}")
            if sl < 2:
                for j in range(2):
                    a.I(f"v_dot2_f32_bf16 v{SQ}, v{b+2*sl+j}, s50, v{SQ}")
                    a.I(f"v_dot2_f32_bf16 v{SQ+1}, v{b+2*sl+j}, v{b+2*sl+j}, v{SQ+1}")
    a.I("s_and_b32 s48, s3, 3")
    a.I("s_lshl_b32 s48, s48, 9")
    a.I(f"v_lshlrev_b32 v{vt}, 3, v{vlane}")
    a.I(f"v_add_u32 v{vt}, s48, v{vt}")
    a.I(f"v_add_u32 v{vt}, {K2_ST}, v{vt}")
    a.I(f"ds_write_b64 v{vt}, {vr(SQ,2)}")
    a.I("s_waitcnt lgkmcnt(0)")
    a.I("s_barrier")
    ST = B
    for sl in range(4):
        a.I(f"s_add_u32 s48, s3, {sl}")
        a.I("s_and_b32 s48, s48, 3")
        a.I("s_lshl_b32 s48, s48, 9")
        a.I(f"s_add_u32 s48, s48, {K2_ST}")
        a.I(f"v_lshlrev_b32 v{vt}, 3, v{vn}")
        a.I(f"v_add_u32 v{vt}, s48, v{vt}")
        a.I(f"ds_read2_b64 {vr(ST+4*sl,4)}, v{vt} offset0:0 offset1:32")
    a.I("s_waitcnt vmcnt(0) lgkmcnt(0)")
    NM = V.alloc(4, 2); RR = V.alloc(4, 2)
    a.I("s_mov_b32 s48, 0x3b124925")
    for sl in range(4):
        a.I(f"v_add_f32 v{NM+sl}, v{ST+4*sl}, v{ST+4*sl+2}")
        a.I(f"v_add_f32 v{RR+sl}, v{ST+4*sl+1}, v{ST+4*sl+3}")
        a.I(f"v_mul_f32 v{NM+sl}, s48, v{NM+sl}")
        a.I(f"v_mul_f32 v{RR+sl}, s48, v{RR+sl}")
        a.I(f"v_fma_f32 v{RR+sl}, -v{NM+sl}, v{NM+sl}, v{RR+sl}")
        a.I(f"v_max_f32 v{RR+sl}, 0, v{RR+sl}")
    for p in range(2):
        rnd2(a, NM + 2 * p, vt); rnd2(a, RR + 2 * p, vt2)
    for sl in range(4):
        a.I(f"v_add_f32 v{RR+sl}, 0x3727c5ac, v{RR+sl}")
    for p in range(2): rnd2(a, RR + 2 * p, vt)
    for sl in range(4):
        a.I(f"v_sqrt_f32 v{RR+sl}, v{RR+sl}")
    for p in range(2): rnd2(a, RR + 2 * p, vt)
    for sl in range(4):
        a.I(f"v_rcp_f32 v{RR+sl}, v{RR+sl}")
    a.I("s_mov_b32 s52, 0xc0135761")
    a.I("s_mov_b32 s53, 0xbdd2d3e8")
    import struct
    c0 = -2.0 * 0.7978845608028654 * 1.4426950408889634
    c1 = c0 * 0.044715
    h0 = struct.unpack("<I", struct.pack("<f", c0))[0]; h1 = struct.unpack("<I", struct.pack("<f", c1))[0]
    a.lines[-2] = f"    s_mov_b32 s52, {h0:#x}"; a.lines[-1] = f"    s_mov_b32 s53, {h1:#x}"
    vc0 = V.alloc()
    a.I(f"v_mov_b32 v{vc0}, s52")
    Gt = V.alloc(2, 2); Ut = V.alloc(2, 2); Tt = V.alloc(2, 2); OUT = V.alloc(8, 4)
    for sl in range(4):
        o = OUT + 4 * (sl & 1)
        for qp in range(4):
            for e in range(2):
                q = 2 * qp + e
                ag = AC + 16 * sl + q; au = AC + 16 * sl + 8 + q
                a.I(f"v_fma_f32 v{Gt+e}, -v{NM+sl}, v{CSR+q}, v{ag}")
                a.I(f"v_fma_f32 v{Gt+e}, v{Gt+e}, v{RR+sl}, v{CSR+8+q}")
                a.I(f"v_fma_f32 v{Ut+e}, -v{NM+sl}, v{CSR+16+q}, v{au}")
                a.I(f"v_fma_f32 v{Ut+e}, v{Ut+e}, v{RR+sl}, v{CSR+24+q}")
            rnd2(a, Gt, vt); rnd2(a, Ut, vt2)
            for e in range(2):
                a.I(f"v_mul_f32 v{Tt+e}, v{Gt+e}, v{Gt+e}")
                a.I(f"v_fma_f32 v{Tt+e}, v{Tt+e}, s53, v{vc0}")
                a.I(f"v_mul_f32 v{Tt+e}, v{Tt+e}, v{Gt+e}")
            for e in range(2): a.I(f"v_exp_f32 v{Tt+e}, v{Tt+e}")
            for e in range(2): a.I(f"v_add_f32 v{Tt+e}, 1.0, v{Tt+e}")
            for e in range(2): a.I(f"v_rcp_f32 v{Tt+e}, v{Tt+e}")
            for e in range(2): a.I(f"v_mul_f32 v{Gt+e}, v{Gt+e}, v{Tt+e}")
            rnd2(a, Gt, vt)
            for e in range(2): a.I(f"v_mul_f32 v{Gt+e}, v{Gt+e}, v{Ut+e}")
            a.I(f"v_cvt_pk_bf16_f32 v{o+qp}, v{Gt}, v{Gt+1}")
        a.I(f"s_add_u32 s48, s3, {sl}")
        a.I("s_and_b32 s48, s48, 3")
        a.I("s_lshl_b32 s49, s46, 2")
        a.I("s_add_u32 s48, s48, s49")
        a.I("s_mul_i32 s48, s48, 112")
        a.I("s_add_u32 s48, s48, s47")
        a.I("s_lshl_b32 s48, s48, 10")
        a.I(f"buffer_store_dwordx4 {vr(o,4)}, v{vw}, s[32:35], s48 offen")
    a.label("K2_END")
    a.I("s_endpgm")
    return V.hi

K3_LDS = 12 * 4096
def gen_k3(a):
    khead(a, "k3_kernel")
    a.I("s_cmp_ge_u32 s2, 224")
    a.I("s_cbranch_scc1 K3_END")
    a.I("s_load_dwordx2 s[14:15], s[0:1], 96")
    a.I("s_load_dwordx2 s[16:17], s[0:1], 112")
    a.I("v_lshrrev_b32 v1, 6, v0")
    a.I("v_readfirstlane_b32 s3, v1")
    a.I("s_and_b32 s44, s2, 7")
    a.I("s_lshr_b32 s45, s2, 3")
    a.I("s_lshl_b32 s46, s44, 2")
    a.I("s_and_b32 s47, s45, 3")
    a.I("s_add_u32 s46, s46, s47")
    a.I("s_lshr_b32 s47, s45, 2")
    a.I("s_lshr_b32 s48, s3, 1")
    a.I("s_and_b32 s49, s3, 1")
    a.I("s_waitcnt lgkmcnt(0)")
    srd(a, 20, 16, WDP, WDP_SZ)
    srd(a, 24, 16, ACT, ACT_SZ)
    srd(a, 28, 16, X2T, X2T_SZ)
    srd(a, 32, 16, MOD, MOD_SZ)
    srd(a, 36, 14, 0, XSZ)
    V = Regs('v', 1, 256)
    vlane = V.alloc(); vt = V.alloc(); vt2 = V.alloc(); vw = V.alloc(); vh = V.alloc(); vn = V.alloc()
    a.I(f"v_and_b32 v{vlane}, 63, v0")
    a.I(f"v_lshrrev_b32 v{vh}, 5, v{vlane}")
    a.I(f"v_and_b32 v{vn}, 31, v{vlane}")
    a.I(f"v_lshlrev_b32 v{vw}, 4, v{vlane}")
    a.I("s_lshl_b32 s52, s47, 1")
    a.I("s_add_u32 s52, s52, s48")
    a.I("s_xor_b32 s53, s52, 1")
    a.I("s_lshl_b32 s54, s46, 1")
    a.I("s_add_u32 s54, s54, s49")
    a.I("s_xor_b32 s55, s54, 1")
    a.I("s_mul_i32 s60, s3, 28")
    for (dst, src) in ((56, 52), (57, 53), (58, 54), (59, 55)):
        a.I(f"s_mul_i32 s{dst}, s{src}, 112")
        a.I(f"s_add_u32 s{dst}, s{dst}, s60")
        a.I(f"s_lshl_b32 s{dst}, s{dst}, 10")
    X2 = V.alloc(16); GB = V.alloc(16, 4)
    vx = V.alloc()
    a.I(f"v_lshlrev_b32 v{vx}, 14, v{vh}")
    a.I(f"v_lshl_add_u32 v{vx}, v{vn}, 1, v{vx}")
    a.I("s_lshl_b32 s61, s52, 17")
    a.I("s_lshl_b32 s62, s54, 6")
    a.I("s_add_u32 s61, s61, s62")
    for j in range(4):
        for i in range(4):
            a.I(f"s_add_u32 s62, s61, {(8*j+i)*4096}")
            a.I(f"buffer_load_ushort v{X2+4*j+i}, v{vx}, s[28:31], s62 offen")
    a.I(f"v_lshlrev_b32 v{vt}, 4, v{vh}")
    a.I("s_lshl_b32 s62, s52, 7")
    a.I(f"s_add_u32 s62, s62, {5*448*4}")
    for j in range(4):
        a.I(f"buffer_load_dwordx4 {vr(GB+4*j,4)}, v{vt}, s[32:35], s62 offen offset:{32*j}")
    PF = 8
    F = V.alloc(16 * PF, 4)
    AC = V.alloc(64, 4)
    def ld(t):
        f = F + 16 * (t % PF)
        off = 1024 * (t & 3)
        a.I(f"buffer_load_dwordx4 {vr(f,4)}, v{vw}, s[20:23], s56 offen offset:{off}")
        a.I(f"buffer_load_dwordx4 {vr(f+8,4)}, v{vw}, s[24:27], s58 offen offset:{off}")
        a.I(f"buffer_load_dwordx4 {vr(f+4,4)}, v{vw}, s[20:23], s57 offen offset:{off}")
        a.I(f"buffer_load_dwordx4 {vr(f+12,4)}, v{vw}, s[24:27], s59 offen offset:{off}")
        if t & 3 == 3:
            for s in (56, 57, 58, 59): a.I(f"s_add_u32 s{s}, s{s}, 4096")
    for t in range(PF - 1): ld(t)
    for j in range(64): a.I(f"v_mov_b32 v{AC+j}, 0")
    for t in range(28):
        if t + PF - 1 < 28:
            ld(t + PF - 1)
            a.I(f"s_waitcnt vmcnt({4*(PF-1)})")
        else:
            a.I(f"s_waitcnt vmcnt({4*(27-t)})")
        f = F + 16 * (t % PF)
        for tau in range(4):
            a.I(f"v_mfma_f32_32x32x16_bf16 {vr(AC+16*tau,16)}, {vr(f+4*(tau>>1),4)}, {vr(f+8+4*(tau&1),4)}, {vr(AC+16*tau,16)}")
    for tau in range(1, 4):
        a.I(f"s_xor_b32 s62, s3, {tau}")
        a.I("s_mul_i32 s62, s62, 3")
        a.I(f"s_add_u32 s62, s62, {tau-1}")
        a.I("s_lshl_b32 s62, s62, 12")
        a.I(f"v_add_u32 v{vt}, s62, v{vw}")
        for j in range(4):
            a.I(f"ds_write_b128 v{vt}, {vr(AC+16*tau+4*j,4)} offset:{1024*j}")
    a.I("s_waitcnt lgkmcnt(0)")
    a.I("s_barrier")
    a.I("s_mul_i32 s62, s3, 12288")
    a.I(f"v_add_u32 v{vt}, s62, v{vw}")
    for sl in range(3):
        for j in range(4):
            a.I(f"ds_read_b128 {vr(F+16*sl+4*j,4)}, v{vt} offset:{4096*sl+1024*j}")
    vs = V.alloc()
    a.I(f"v_mul_u32_u24 v{vs}, 896, v{vn}")
    a.I(f"v_lshl_add_u32 v{vs}, v{vh}, 3, v{vs}")
    a.I("s_mul_i32 s62, s54, %d" % (32 * 896))
    a.I("s_lshl_b32 s63, s52, 6")
    a.I("s_add_u32 s62, s62, s63")
    a.I("s_waitcnt lgkmcnt(0)")
    Y = V.alloc(2, 2); OUT = V.alloc(8, 2)
    for j in range(4):
        for p in range(2):
            for e in range(2):
                r = 4 * j + 2 * p + e
                a.I(f"v_add_f32 v{Y+e}, v{AC+r}, v{F+r}")
                a.I(f"v_add_f32 v{vt2}, v{F+16+r}, v{F+32+r}")
                a.I(f"v_add_f32 v{Y+e}, v{Y+e}, v{vt2}")
            rnd2(a, Y, vt)
            for e in range(2):
                a.I(f"v_mul_f32 v{Y+e}, v{Y+e}, v{GB+4*j+2*p+e}")
            rnd2(a, Y, vt)
            for e in range(2):
                a.I(f"v_lshlrev_b32 v{vt2}, 16, v{X2+4*j+2*p+e}")
                a.I(f"v_add_f32 v{Y+e}, v{Y+e}, v{vt2}")
            a.I(f"v_cvt_pk_bf16_f32 v{OUT+2*j+p}, v{Y}, v{Y+1}")
        a.I(f"buffer_store_dwordx2 {vr(OUT+2*j,2)}, v{vs}, s[36:39], s62 offen offset:{16*j}")
    a.label("K3_END")
    a.I("s_endpgm")
    return V.hi

def gen_all(body, launches, kds):
    v = gen_k2(body)
    launches.append(("k2_kernel", 224, 512, K2_LDS))
    kds.append(kd("k2_kernel", v))
    v = gen_k3(body)
    launches.append(("k3_kernel", 224, 256, K3_LDS))
    kds.append(kd("k3_kernel", v))
```

```python
from asmlib import *
import gen as G
from gen import srd, kd, khead, unpack, rnd2, MOD, MOD_SZ, URT, XXT, X2T, WP, WP_SZ, CS, CS_SZ, WDP, WDP_SZ, ACT, ACT_SZ, X2T_SZ, XSZ

CPY = 4160
UOFF = 8 * CPY
CHB = UOFF + 95 * 80
K1_LDS = 2 * CHB

def srd_dyn(a, d, lo, off, sreg_mul, mul, size, tmp):
    a.I(f"s_mul_i32 s{tmp}, s{sreg_mul}, {mul}")
    a.I(f"s_add_u32 s{tmp}, s{tmp}, {off}")
    a.I(f"s_add_u32 s{d}, s{lo}, s{tmp}")
    a.I(f"s_addc_u32 s{d+1}, s{lo+1}, 0")
    a.I(f"s_mov_b32 s{d+2}, {size}")
    a.I(f"s_mov_b32 s{d+3}, 0x00020000")

def gen_k1(a):
    khead(a, "k1_kernel")
    a.I("s_cmp_ge_u32 s2, 308")
    a.I("s_cbranch_scc1 K1_END")
    a.I("s_load_dwordx4 s[4:7], s[0:1], 32")
    a.I("s_load_dwordx4 s[8:11], s[0:1], 56")
    a.I("s_load_dwordx2 s[12:13], s[0:1], 72")
    a.I("s_load_dwordx2 s[16:17], s[0:1], 112")
    a.I("s_mov_b32 s50, 0x3f803f80")
    a.I("s_mov_b32 s51, 0x05040100")
    a.I("s_mov_b32 s52, 0x07060302")
    a.I("v_lshrrev_b32 v1, 6, v0")
    a.I("v_readfirstlane_b32 s3, v1")
    a.I("s_waitcnt lgkmcnt(0)")
    a.I("s_cmp_ge_u32 s2, 280")
    a.I("s_cbranch_scc1 K1_WD")
    a.I("s_cmp_ge_u32 s2, 224")
    a.I("s_cbranch_scc1 K1_WG")
    a.I("s_lshr_b32 s44, s3, 1")
    a.I("s_and_b32 s45, s3, 1")
    a.I("s_lshl_b32 s46, s2, 1")
    a.I("s_add_u32 s46, s46, s44")
    srd_dyn(a, 20, 4, 0, 46, 4096, 4096, 47)
    srd_dyn(a, 24, 16, URT, 46, 4096, 4096, 47)
    srd_dyn(a, 28, 16, XXT, 46, 8192, 8192, 47)
    srd_dyn(a, 32, 16, X2T, 46, 4096, 4096, 47)
    a.I("s_lshl_b32 s47, s46, 2")
    a.I("s_add_u32 s54, s16, s47")
    a.I("s_addc_u32 s55, s17, 0")
    a.I(f"s_load_dword s56, s[54:55], {MOD + 0}")
    a.I(f"s_load_dword s57, s[54:55], {MOD + 448*4}")
    a.I(f"s_load_dword s58, s[54:55], {MOD + 2*448*4}")
    a.I("s_lshl_b32 s47, s2, 2")
    a.I("s_add_u32 s54, s6, s47")
    a.I("s_addc_u32 s55, s7, 0")
    a.I("s_load_dword s59, s[54:55], 0")
    a.I(f"s_mul_i32 s48, s44, {CHB}")
    V = Regs('v', 1, 256)
    vl = V.alloc(); vlane = V.alloc(); vt = V.alloc(); vt2 = V.alloc(); va = V.alloc(); vh = V.alloc()
    E = V.alloc(12, 4); UU = V.alloc(8, 4); XX = V.alloc(16, 4)
    a.I(f"v_and_b32 v{vl}, 127, v0")
    a.I(f"v_and_b32 v{vlane}, 63, v0")
    a.I(f"v_and_b32 v{va}, 31, v0")
    a.I(f"v_bfe_u32 v{vh}, v0, 5, 1")
    a.I(f"v_lshlrev_b32 v{vt}, 5, v{vl}")
    a.I(f"v_subrev_u32 v{vt2}, 16, v{vt}")
    a.I(f"buffer_load_dwordx4 {vr(E,4)}, v{vt2}, s[20:23], 0 offen")
    a.I(f"buffer_load_dwordx4 {vr(E+4,4)}, v{vt}, s[20:23], 0 offen")
    a.I(f"buffer_load_dwordx4 {vr(E+8,4)}, v{vt}, s[20:23], 0 offen offset:16")
    a.I(f"buffer_load_dwordx4 {vr(UU,4)}, v{vt}, s[24:27], 0 offen")
    a.I(f"buffer_load_dwordx4 {vr(UU+4,4)}, v{vt}, s[24:27], 0 offen offset:16")
    vx = V.alloc()
    a.I("s_lshl_b32 s47, s45, 12")
    a.I(f"v_lshlrev_b32 v{vx}, 7, v{va}")
    a.I(f"v_lshl_add_u32 v{vx}, v{vh}, 4, v{vx}")
    for j in range(4):
        a.I(f"buffer_load_dwordx4 {vr(XX+4*j,4)}, v{vx}, s[28:31], s47 offen offset:{32*j}")
    Z = V.alloc(4, 4)
    for j in range(4): a.I(f"v_mov_b32 v{Z+j}, 0")
    a.I(f"v_lshrrev_b32 v{vt}, 2, v{vl}")
    a.I(f"v_mul_u32_u24 v{vt}, {CPY}, v{vt}")
    a.I(f"v_and_b32 v{vt2}, 3, v{vl}")
    a.I(f"v_lshl_add_u32 v{vt}, v{vt2}, 4, v{vt}")
    a.I(f"v_add_u32 v{vt}, s48, v{vt}")
    a.I(f"v_cmp_gt_u32 vcc, 32, v{vl}")
    a.I(f"v_cmp_ne_u32 s[60:61], 3, v{vt2}")
    a.I("s_and_b64 vcc, vcc, s[60:61]")
    a.I("s_and_saveexec_b64 s[62:63], vcc")
    a.I(f"ds_write_b128 v{vt}, {vr(Z,4)}")
    a.I("s_mov_b64 exec, s[62:63]")
    a.I(f"v_lshrrev_b32 v{vt}, 2, v{vl}")
    a.I(f"v_mul_u32_u24 v{vt}, 80, v{vt}")
    a.I(f"v_lshl_add_u32 v{vt}, v{vt2}, 4, v{vt}")
    a.I(f"v_add_u32 v{vt}, s48, v{vt}")
    a.I(f"v_cmp_gt_u32 vcc, 124, v{vl}")
    a.I("s_and_saveexec_b64 s[62:63], vcc")
    a.I(f"ds_write_b128 v{vt}, {vr(Z,4)} offset:{UOFF + 80*64}")
    a.I("s_mov_b64 exec, s[62:63]")
    E1 = V.alloc(10, 2); O = V.alloc(10, 2); O1 = V.alloc(10, 2)
    vw = V.alloc(); vu = V.alloc()
    a.I(f"v_lshlrev_b32 v{vw}, 5, v{vl}")
    a.I(f"v_add_u32 v{vw}, s48, v{vw}")
    a.I(f"v_lshrrev_b32 v{vu}, 1, v{vl}")
    a.I(f"v_mul_u32_u24 v{vu}, 80, v{vu}")
    a.I(f"v_and_b32 v{vt}, 1, v{vl}")
    a.I(f"v_lshl_add_u32 v{vu}, v{vt}, 5, v{vu}")
    a.I(f"v_add_u32 v{vu}, s48, v{vu}")
    a.I("s_waitcnt vmcnt(6)")
    def wr(c, base):
        a.I(f"ds_write_b128 v{vw}, {vr(base,4)} offset:{48 + CPY*c}")
        a.I(f"ds_write_b128 v{vw}, {vr(base+4,4)} offset:{48 + CPY*c + 16}")
    wr(3, E + 2); wr(7, E + 4)
    for j in range(10):
        a.I(f"v_alignbit_b32 v{O+j}, v{E+j+1}, v{E+j}, 16")
    wr(0, O); wr(4, O + 2)
    for j in range(10):
        a.I(f"v_alignbit_b32 v{O1+j}, v{E+j+2}, v{E+j+1}, 16")
    wr(2, O1); wr(6, O1 + 2)
    for j in range(10):
        a.I(f"v_mov_b32 v{E1+j}, v{E+j+1}")
    wr(1, E1); wr(5, E1 + 2)
    a.I("s_waitcnt vmcnt(4)")
    a.I(f"ds_write_b128 v{vu}, {vr(UU,4)} offset:{UOFF}")
    a.I(f"ds_write_b128 v{vu}, {vr(UU+4,4)} offset:{UOFF+16}")
    vA = V.alloc(); vB = V.alloc()
    a.I("s_xor_b32 s47, s45, 1")
    a.I("s_lshl_b32 s47, s47, 5")
    a.I("s_add_u32 s47, s47, s48")
    a.I(f"v_and_b32 v{vt}, 7, v{va}")
    a.I(f"v_mul_u32_u24 v{vA}, {CPY}, v{vt}")
    a.I(f"v_lshrrev_b32 v{vt}, 3, v{va}")
    a.I(f"v_add_u32 v{vt}, v{vt}, v{vh}")
    a.I(f"v_lshl_add_u32 v{vA}, v{vt}, 4, v{vA}")
    a.I(f"v_add_u32 v{vA}, s47, v{vA}")
    a.I(f"v_sub_u32 v{vt}, 31, v{va}")
    a.I(f"v_mul_u32_u24 v{vB}, 80, v{vt}")
    a.I(f"v_lshl_add_u32 v{vB}, v{vh}, 4, v{vB}")
    a.I(f"v_add_u32 v{vB}, s47, v{vB}")
    AC0 = V.alloc(16, 4); AC1 = V.alloc(16, 4)
    NPF = 3
    F = V.alloc(16 * NPF, 4)
    for j in range(16):
        a.I(f"v_mov_b32 v{AC0+j}, 0")
        a.I(f"v_mov_b32 v{AC1+j}, 0")
    a.I("s_waitcnt lgkmcnt(0)")
    a.I("s_barrier")
    def ld(e):
        f = F + 16 * (e % NPF)
        a.I(f"ds_read_b128 {vr(f,4)}, v{vA} offset:{64*e}")
        a.I(f"ds_read_b128 {vr(f+4,4)}, v{vB} offset:{UOFF + 80*e}")
        a.I(f"ds_read_b128 {vr(f+8,4)}, v{vB} offset:{UOFF + 80*(32+e)}")
        a.I(f"ds_read_b128 {vr(f+12,4)}, v{vA} offset:{64*(32+e)}")
    for e in range(NPF - 1): ld(e)
    for e in range(32):
        if e + NPF - 1 < 32:
            ld(e + NPF - 1)
            a.I(f"s_waitcnt lgkmcnt({4*(NPF-1)})")
        else:
            a.I(f"s_waitcnt lgkmcnt({4*(31-e)})")
        f = F + 16 * (e % NPF)
        a.I(f"v_mfma_f32_32x32x16_bf16 {vr(AC1,16)}, {vr(f,4)}, {vr(f+4,4)}, {vr(AC1,16)}")
        a.I(f"v_mfma_f32_32x32x16_bf16 {vr(AC0,16)}, {vr(f,4)}, {vr(f+8,4)}, {vr(AC0,16)}")
        a.I(f"v_mfma_f32_32x32x16_bf16 {vr(AC1,16)}, {vr(f+12,4)}, {vr(f+8,4)}, {vr(AC1,16)}")
    a.I("s_barrier")
    vxw = V.alloc(); vxr = V.alloc()
    a.I("s_lshl_b32 s47, s45, 12")
    a.I("s_add_u32 s47, s47, s48")
    a.I(f"v_lshlrev_b32 v{vxw}, 4, v{vlane}")
    a.I(f"v_add_u32 v{vxw}, s47, v{vxw}")
    a.I(f"v_xor_b32 v{vxr}, 4096, v{vxw}") if False else None
    a.I("s_xor_b32 s47, s45, 1")
    a.I("s_lshl_b32 s47, s47, 12")
    a.I("s_add_u32 s47, s47, s48")
    a.I(f"v_lshlrev_b32 v{vxr}, 4, v{vlane}")
    a.I(f"v_add_u32 v{vxr}, s47, v{vxr}")
    a.I("s_cmp_eq_u32 s45, 0")
    a.I("s_cbranch_scc1 K1_NOSWAP")
    a.I("s_nop 15")
    for j in range(16):
        a.I(f"v_swap_b32 v{AC0+j}, v{AC1+j}")
    a.label("K1_NOSWAP")
    a.I("s_nop 15")
    for j in range(4):
        a.I(f"ds_write_b128 v{vxw}, {vr(AC1+4*j,4)} offset:{1024*j}")
    vur = V.alloc(); U4 = V.alloc(8, 2)
    a.I("s_lshl_b32 s47, s45, 5")
    a.I("s_sub_u32 s47, 63, s47")
    a.I(f"v_sub_u32 v{vt}, s47, v{va}")
    a.I(f"v_mul_u32_u24 v{vur}, 80, v{vt}")
    a.I(f"v_lshlrev_b32 v{vt}, 3, v{vh}")
    a.I(f"v_sub_u32 v{vur}, v{vur}, v{vt}")
    a.I(f"v_add_u32 v{vur}, s48, v{vur}")
    for j in range(4):
        a.I(f"ds_read_b64 {vr(U4+2*j,2)}, v{vur} offset:{UOFF + 56 - 16*j}")
    a.I("s_waitcnt lgkmcnt(0)")
    a.I("s_barrier")
    T = F
    for j in range(4):
        a.I(f"ds_read_b128 {vr(T+4*j,4)}, v{vxr} offset:{1024*j}")
    vD = V.alloc(); vca = V.alloc(); vsa = V.alloc(); vga = V.alloc()
    a.I("s_lshl_b32 s47, s44, 4")
    a.I("s_lshr_b32 s59, s59, s47")
    a.I("s_lshl_b32 s59, s59, 16")
    a.I(f"v_mov_b32 v{vD}, s59")
    a.I(f"v_add_f32 v{vca}, 1.0, s57") if False else a.I(f"v_mov_b32 v{vca}, s57")
    a.I(f"v_add_f32 v{vca}, 1.0, v{vca}")
    a.I(f"v_cvt_pk_bf16_f32 v{vca}, v{vca}, v{vca}")
    a.I(f"v_lshlrev_b32 v{vca}, 16, v{vca}")
    a.I(f"v_mov_b32 v{vsa}, s56")
    a.I(f"v_mov_b32 v{vga}, s58")
    vs = V.alloc()
    a.I(f"v_lshlrev_b32 v{vs}, 6, v{va}")
    a.I(f"v_lshl_add_u32 v{vs}, v{vh}, 3, v{vs}")
    a.I("s_lshl_b32 s47, s45, 11")
    a.I("s_waitcnt vmcnt(0) lgkmcnt(0)")
    Y = V.alloc(2, 2); Kd = V.alloc(2, 2); H = V.alloc(2, 2); X = V.alloc(2, 2); OUT = V.alloc(8, 2)
    for j in range(4):
        for p in range(2):
            i0 = 2 * p
            a.I(f"v_add_f32 v{Y}, v{AC0+4*j+i0}, v{T+4*j+i0}")
            a.I(f"v_add_f32 v{Y+1}, v{AC0+4*j+i0+1}, v{T+4*j+i0+1}")
            rnd2(a, Y, vt)
            ud = U4 + 2 * j + (1 - p)
            a.I(f"v_and_b32 v{Kd}, 0xffff0000, v{ud}")
            a.I(f"v_lshlrev_b32 v{Kd+1}, 16, v{ud}")
            a.I(f"v_mul_f32 v{Kd}, v{Kd}, v{vD}")
            a.I(f"v_mul_f32 v{Kd+1}, v{Kd+1}, v{vD}")
            rnd2(a, Kd, vt2)
            a.I(f"v_add_f32 v{Y}, v{Y}, v{Kd}")
            a.I(f"v_add_f32 v{Y+1}, v{Y+1}, v{Kd+1}")
            rnd2(a, Y, vt)
            a.I(f"v_and_b32 v{H}, 0xffff0000, v{XX+4*j+i0}")
            a.I(f"v_and_b32 v{H+1}, 0xffff0000, v{XX+4*j+i0+1}")
            a.I(f"v_mul_f32 v{H}, v{H}, v{vca}")
            a.I(f"v_mul_f32 v{H+1}, v{H+1}, v{vca}")
            rnd2(a, H, vt2)
            a.I(f"v_add_f32 v{H}, v{H}, v{vsa}")
            a.I(f"v_add_f32 v{H+1}, v{H+1}, v{vsa}")
            rnd2(a, H, vt2)
            a.I(f"v_mul_f32 v{H}, v{H}, v{Y}")
            a.I(f"v_mul_f32 v{H+1}, v{H+1}, v{Y+1}")
            rnd2(a, H, vt2)
            a.I(f"v_mul_f32 v{H}, v{H}, v{vga}")
            a.I(f"v_mul_f32 v{H+1}, v{H+1}, v{vga}")
            rnd2(a, H, vt2)
            a.I(f"v_lshlrev_b32 v{X}, 16, v{XX+4*j+i0}")
            a.I(f"v_lshlrev_b32 v{X+1}, 16, v{XX+4*j+i0+1}")
            a.I(f"v_add_f32 v{X}, v{X}, v{H}")
            a.I(f"v_add_f32 v{X+1}, v{X+1}, v{H+1}")
            a.I(f"v_cvt_pk_bf16_f32 v{OUT+2*j+p}, v{X}, v{X+1}")
        a.I(f"buffer_store_dwordx2 {vr(OUT+2*j,2)}, v{vs}, s[32:35], s47 offen offset:{16*j}")
    a.I("s_endpgm")
    hi = V.hi
    a.label("K1_WG")
    a.I("s_sub_u32 s44, s2, 224")
    a.I("s_cmp_ge_u32 s44, 28")
    a.I("s_cselect_b32 s45, 1, 0")
    a.I("s_cselect_b32 s54, s10, s8")
    a.I("s_cselect_b32 s55, s11, s9")
    a.I("s_mul_i32 s46, s45, 28")
    a.I("s_sub_u32 s46, s44, s46")
    srd(a, 20, 54, 0, 448 * 3584)
    srd(a, 24, 16, MOD, MOD_SZ)
    srd(a, 28, 16, WP, WP_SZ)
    srd(a, 32, 16, CS, CS_SZ)
    V = Regs('v', 1, 256)
    vt = V.alloc(); vt2 = V.alloc(); vfp = V.alloc(); vdg = V.alloc(); vo = V.alloc(); vm = V.alloc(); vst = V.alloc()
    a.I(f"v_and_b32 v{vfp}, 31, v0")
    a.I(f"v_lshrrev_b32 v{vdg}, 5, v0")
    a.I("s_lshl_b32 s47, s46, 7")
    a.I(f"v_mul_u32_u24 v{vo}, {8*3584}, v{vdg}")
    a.I(f"v_lshl_add_u32 v{vo}, v{vfp}, 2, v{vo}")
    a.I(f"v_add_u32 v{vo}, s47, v{vo}")
    a.I(f"v_lshlrev_b32 v{vm}, 5, v{vdg}")
    a.I("s_lshl_b32 s47, s46, 2")
    a.I(f"v_lshrrev_b32 v{vt}, 3, v{vfp}")
    a.I(f"v_add_u32 v{vt}, s47, v{vt}")
    a.I(f"v_mul_u32_u24 v{vt}, 28, v{vt}")
    a.I(f"v_lshrrev_b32 v{vt2}, 1, v{vdg}")
    a.I(f"v_add_u32 v{vt}, v{vt}, v{vt2}")
    a.I(f"v_lshlrev_b32 v{vst}, 10, v{vt}")
    a.I(f"v_and_b32 v{vt}, 7, v{vfp}")
    a.I(f"v_lshl_add_u32 v{vst}, v{vt}, 5, v{vst}")
    a.I(f"v_and_b32 v{vt}, 1, v{vdg}")
    a.I(f"v_lshl_add_u32 v{vst}, v{vt}, 9, v{vst}")
    a.I("s_lshl_b32 s47, s45, 8")
    a.I(f"v_add_u32 v{vst}, s47, v{vst}")
    NB = 2
    Wr = V.alloc(8 * 7); CB_ = V.alloc(8 * 7, 4); SB_ = V.alloc(8 * 7, 4)
    a.I("s_mov_b32 s47, 0")
    a.I("s_mov_b32 s48, 3584*4") if False else a.I("s_mov_b32 s49, 0")
    for i in range(7):
        a.I(f"s_mov_b32 s47, {i*64*3584}")
        a.I(f"s_mov_b32 s48, {i*64*3584 + 3584}")
        for idx in range(8):
            so = i * 64 * 3584 + idx * 3584
            a.I(f"s_mov_b32 s47, {so}")
            a.I(f"buffer_load_dword v{Wr+8*i+idx}, v{vo}, s[20:23], s47 offen")
        a.I(f"buffer_load_dwordx4 {vr(CB_+8*i,4)}, v{vm}, s[24:27], 0 offen offset:{4*448*4 - 4096*1 + 256*i}") if False else None
        a.I(f"s_mov_b32 s47, {4*448*4 + 256*i}")
        a.I(f"buffer_load_dwordx4 {vr(CB_+8*i,4)}, v{vm}, s[24:27], s47 offen")
        a.I(f"buffer_load_dwordx4 {vr(CB_+8*i+4,4)}, v{vm}, s[24:27], s47 offen offset:16")
        a.I(f"s_mov_b32 s47, {3*448*4 + 256*i}")
        a.I(f"buffer_load_dwordx4 {vr(SB_+8*i,4)}, v{vm}, s[24:27], s47 offen")
        a.I(f"buffer_load_dwordx4 {vr(SB_+8*i+4,4)}, v{vm}, s[24:27], s47 offen offset:16")
    AC = V.alloc(4, 4)
    for j in range(4): a.I(f"v_mov_b32 v{AC+j}, 0")
    LO = V.alloc(8, 2); HI = V.alloc(8, 2); PK = V.alloc(8, 4)
    for i in range(7):
        a.I(f"s_waitcnt vmcnt({min(63, 12*(6-i) + 2*i)})")
        for idx in range(8):
            a.I(f"v_add_f32 v{CB_+8*i+idx}, 1.0, v{CB_+8*i+idx}")
        for idx in range(0, 8, 2):
            rnd2(a, CB_ + 8 * i + idx, vt)
        for idx in range(8):
            unpack(a, LO + idx, HI + idx, Wr + 8 * i + idx)
            a.I(f"v_fmac_f32 v{AC+2}, v{LO+idx}, v{SB_+8*i+idx}")
            a.I(f"v_fmac_f32 v{AC+3}, v{HI+idx}, v{SB_+8*i+idx}")
            a.I(f"v_mul_f32 v{LO+idx}, v{LO+idx}, v{CB_+8*i+idx}")
            a.I(f"v_mul_f32 v{HI+idx}, v{HI+idx}, v{CB_+8*i+idx}")
        for j in range(4):
            a.I(f"v_cvt_pk_bf16_f32 v{PK+j}, v{LO+2*j}, v{LO+2*j+1}")
            a.I(f"v_cvt_pk_bf16_f32 v{PK+4+j}, v{HI+2*j}, v{HI+2*j+1}")
        for j in range(4):
            a.I(f"v_dot2_f32_bf16 v{AC}, v{PK+j}, s50, v{AC}")
            a.I(f"v_dot2_f32_bf16 v{AC+1}, v{PK+4+j}, s50, v{AC+1}")
        a.I(f"s_mov_b32 s47, {i*4096}")
        a.I(f"buffer_store_dwordx4 {vr(PK,4)}, v{vst}, s[28:31], s47 offen")
        a.I(f"buffer_store_dwordx4 {vr(PK+4,4)}, v{vst}, s[28:31], s47 offen offset:16")
    a.I(f"v_lshlrev_b32 v{vt}, 4, v0")
    a.I(f"ds_write_b128 v{vt}, {vr(AC,4)}")
    a.I("s_waitcnt lgkmcnt(0)")
    a.I("s_barrier")
    a.I(f"v_cmp_gt_u32 vcc, 128, v0")
    a.I("s_and_saveexec_b64 s[62:63], vcc")
    a.I("s_cbranch_execz K1_END")
    R = V.alloc(8, 2)
    a.I(f"v_lshlrev_b32 v{vt}, 2, v0")
    for j in range(8):
        a.I(f"ds_read_b32 v{R+j}, v{vt} offset:{512*j}")
    vf = V.alloc()
    a.I(f"v_lshrrev_b32 v{vf}, 2, v0")
    a.I(f"v_lshlrev_b32 v{vf}, 1, v{vf}")
    a.I(f"v_and_b32 v{vt2}, 1, v0")
    a.I(f"v_add_u32 v{vf}, v{vf}, v{vt2}")
    a.I("s_lshl_b32 s47, s46, 2")
    a.I(f"v_lshrrev_b32 v{vt}, 4, v{vf}")
    a.I(f"v_add_u32 v{vt}, s47, v{vt}")
    a.I(f"v_lshlrev_b32 v{vt}, 1, v{vt}")
    a.I(f"v_bfe_u32 v{vt2}, v{vf}, 2, 1")
    a.I(f"v_add_u32 v{vt}, v{vt}, v{vt2}")
    a.I(f"v_lshlrev_b32 v{vt}, 2, v{vt}")
    a.I(f"v_bfe_u32 v{vt2}, v0, 1, 1")
    a.I(f"v_add_u32 v{vt}, v{vt}, v{vt2}")
    a.I("s_lshl_b32 s47, s45, 1")
    a.I(f"v_add_u32 v{vt}, s47, v{vt}")
    a.I(f"v_lshlrev_b32 v{vt}, 3, v{vt}")
    a.I(f"v_bfe_u32 v{vt2}, v{vf}, 3, 1")
    a.I(f"v_lshl_add_u32 v{vt}, v{vt2}, 2, v{vt}")
    a.I(f"v_and_b32 v{vt2}, 3, v{vf}")
    a.I(f"v_add_lshl_u32 v{vt}, v{vt}, v{vt2}, 2")
    a.I("s_waitcnt lgkmcnt(0)")
    for j in range(1, 8):
        a.I(f"v_add_f32 v{R}, v{R}, v{R+j}")
    a.I(f"buffer_store_dword v{R}, v{vt}, s[32:35], 0 offen")
    a.I("s_endpgm")
    hi = max(hi, V.hi)
    a.label("K1_WD")
    a.I("s_sub_u32 s44, s2, 280")
    srd(a, 20, 12, 0, 1792 * 896)
    srd(a, 28, 16, WDP, WDP_SZ)
    a.I(f"v_cmp_gt_u32 vcc, 224, v0")
    a.I("s_and_saveexec_b64 s[62:63], vcc")
    a.I("s_cbranch_execz K1_END")
    V = Regs('v', 1, 256)
    vt = V.alloc(); vo = V.alloc(); vst = V.alloc()
    a.I(f"v_lshlrev_b32 v{vo}, 2, v0")
    a.I(f"v_lshrrev_b32 v{vt}, 4, v0")
    a.I(f"v_mul_u32_u24 v{vst}, {112*1024}, v{vt}")
    a.I(f"v_and_b32 v{vt}, 15, v0")
    a.I(f"v_lshl_add_u32 v{vst}, v{vt}, 5, v{vst}")
    Wr = V.alloc(64); PK = V.alloc(16, 4)
    a.I("s_mul_i32 s45, s44, %d" % (64 * 896))
    for i in range(8):
        for idx in range(8):
            row = 16 * (i >> 1) + 4 * (i & 1) + (idx & 3) + 8 * (idx >> 2)
            a.I(f"s_add_u32 s47, s45, {row*896}")
            a.I(f"buffer_load_dword v{Wr+8*i+idx}, v{vo}, s[20:23], s47 offen")
    a.I("s_lshl_b32 s45, s44, 12")
    for i in range(8):
        a.I(f"s_waitcnt vmcnt({min(63, 8*(7-i) + 2*i)})")
        P = PK + 8 * (i & 1)
        for j in range(4):
            a.I(f"v_perm_b32 v{P+j}, v{Wr+8*i+2*j+1}, v{Wr+8*i+2*j}, s51")
            a.I(f"v_perm_b32 v{P+4+j}, v{Wr+8*i+2*j+1}, v{Wr+8*i+2*j}, s52")
        a.I(f"s_add_u32 s47, s45, {(i>>1)*1024 + (i&1)*512}")
        a.I(f"buffer_store_dwordx4 {vr(P,4)}, v{vst}, s[28:31], s47 offen")
        a.I(f"buffer_store_dwordx4 {vr(P+4,4)}, v{vst}, s[28:31], s47 offen offset:16")
    a.label("K1_END")
    a.I("s_endpgm")
    return max(hi, V.hi)

def gen_all(body, launches, kds):
    v = gen_k1(body)
    launches.append(("k1_kernel", 308, 256, K1_LDS))
    kds.append(kd("k1_kernel", v))
    try:
        import gen_gemm
        gen_gemm.gen_all(body, launches, kds)
    except ImportError:
        pass
```

```python
import sys
from asmlib import *

NAME = "adaLN_cond__ssm_conv_h3__geglu_ffn__prompt"
MOD = 0x0;        MOD_SZ = 2688 * 4
URT = 0x10000;    URT_SZ = 448 * 2048 * 2
XXT = 0x200000;   XXT_SZ = 448 * 2048 * 4
X2T = 0x600000;   X2T_SZ = 448 * 2048 * 2
WP  = 0x800000;   WP_SZ = 112 * 28 * 1024
CS  = 0xC00000;   CS_SZ = 112 * 256
WDP = 0xD00000;   WDP_SZ = 14 * 112 * 1024
ACT = 0x1000000;  ACT_SZ = 64 * 112 * 1024
XSZ = 2048 * 448 * 2

def srd(a, d, lo, off, size):
    if off:
        a.I(f"s_add_u32 s{d}, s{lo}, {off}")
        a.I(f"s_addc_u32 s{d+1}, s{lo+1}, 0")
    else:
        a.I(f"s_mov_b32 s{d}, s{lo}")
        a.I(f"s_mov_b32 s{d+1}, s{lo+1}")
    a.I(f"s_mov_b32 s{d+2}, {size}")
    a.I(f"s_mov_b32 s{d+3}, 0x00020000")

def kd(name, vgpr, sgpr=102):
    acc = (vgpr + 3) // 4 * 4
    return f""".p2align 6
.amdhsa_kernel {name}
  .amdhsa_next_free_vgpr {vgpr}
  .amdhsa_next_free_sgpr {sgpr}
  .amdhsa_accum_offset {acc}
  .amdhsa_group_segment_fixed_size 0
  .amdhsa_kernarg_size 120
  .amdhsa_user_sgpr_count 2
  .amdhsa_user_sgpr_kernarg_segment_ptr 1
  .amdhsa_system_sgpr_workgroup_id_x 1
.end_amdhsa_kernel
"""

def khead(a, name):
    a.raw(f".globl {name}\n.p2align 8\n.type {name},@function")
    a.label(name)

def unpack(a, dlo, dhi, src):
    a.I(f"v_lshlrev_b32 v{dlo}, 16, v{src}")
    a.I(f"v_and_b32 v{dhi}, 0xffff0000, v{src}")

def rnd2(a, p, tmp):
    a.I(f"v_cvt_pk_bf16_f32 v{tmp}, v{p}, v{p+1}")
    unpack(a, p, p + 1, tmp)

def wave_reduce(a, regs):
    for ctl in ("row_shr:1 row_mask:0xf bank_mask:0xf", "row_shr:2 row_mask:0xf bank_mask:0xf",
                "row_shr:4 row_mask:0xf bank_mask:0xf", "row_shr:8 row_mask:0xf bank_mask:0xf",
                "row_bcast:15 row_mask:0xa bank_mask:0xf", "row_bcast:31 row_mask:0xc bank_mask:0xf"):
        for r in regs:
            a.I(f"v_add_f32_dpp v{r}, v{r}, v{r} {ctl}")

def gen_k0(a):
    khead(a, "k0_kernel")
    a.I("s_cmp_ge_u32 s2, 277")
    a.I("s_cbranch_scc1 K0_END")
    a.I("s_load_dwordx4 s[4:7], s[0:1], 0")
    a.I("s_load_dwordx4 s[8:11], s[0:1], 16")
    a.I("s_load_dwordx4 s[12:15], s[0:1], 80")
    a.I("s_load_dwordx2 s[16:17], s[0:1], 112")
    a.I("s_mov_b32 s50, 0x3f803f80")
    a.I("s_mov_b32 s51, 0x05040100")
    a.I("s_mov_b32 s52, 0x07060302")
    a.I("s_waitcnt lgkmcnt(0)")
    a.I("s_cmp_ge_u32 s2, 256")
    a.I("s_cbranch_scc1 K0_MOD")
    srd(a, 20, 4, 0, XSZ)
    srd(a, 24, 6, 0, XSZ)
    srd(a, 28, 8, 0, XSZ)
    srd(a, 32, 10, 0, 448 * 8)
    srd(a, 36, 16, URT, URT_SZ)
    srd(a, 40, 16, XXT, XXT_SZ)
    a.I("s_and_b32 s3, s2, 7")
    a.I("s_lshl_b32 s3, s3, 5")
    a.I("s_lshr_b32 s44, s2, 3")
    a.I("s_add_u32 s3, s3, s44")
    a.I("s_lshl_b32 s3, s3, 3")
    a.I("s_mul_i32 s45, s3, 896")
    a.I("s_mov_b32 s46, 4480")
    V = Regs('v', 1, 256)
    vo = V.alloc(); vom = V.alloc(); vst = V.alloc(); vt = V.alloc(); vt2 = V.alloc()
    ST = V.alloc(8, 4); SH = V.alloc(4, 4)
    KR = V.alloc(11); VR = V.alloc(8); XR = V.alloc(8)
    a.I(f"v_lshlrev_b32 v{vo}, 2, v0")
    a.I(f"v_add_u32 v{vo}, s45, v{vo}")
    a.I(f"v_subrev_u32 v{vom}, 2688, v{vo}")
    a.I(f"v_lshrrev_b32 v{vt}, 6, v0")
    a.I(f"v_mul_u32_u24 v{vt}, 1792, v{vt}")
    a.I(f"v_and_b32 v{vt2}, 63, v0")
    a.I(f"v_lshl_add_u32 v{vst}, v{vt2}, 4, v{vt}")
    a.I(f"v_add_u32 v{vst}, s45, v{vst}")
    for i in range(8):
        a.I(f"v_mov_b32 v{ST+i}, 0")
    a.I(f"v_cmp_gt_u32 vcc, 56, v{vt2}")
    a.I("s_and_saveexec_b64 s[48:49], vcc")
    a.I(f"buffer_load_dwordx4 {vr(ST,4)}, v{vst}, s[20:23], 0 offen")
    a.I(f"buffer_load_dwordx4 {vr(ST+4,4)}, v{vst}, s[20:23], 0 offen offset:896")
    a.I("s_mov_b64 exec, s[48:49]")
    def rowload(dst, srdb, r):
        if r < 5:
            a.I(f"buffer_load_dword v{dst}, v{vo}, s[{srdb}:{srdb+3}], 0 offen offset:{r*896}")
        else:
            a.I(f"buffer_load_dword v{dst}, v{vo}, s[{srdb}:{srdb+3}], s46 offen offset:{(r-5)*896}")
    a.I(f"v_lshlrev_b32 v{vt}, 4, v0")
    a.I(f"buffer_load_dwordx4 {vr(SH,4)}, v{vt}, s[32:35], 0 offen")
    for r in range(3):
        a.I(f"buffer_load_dword v{KR+r}, v{vom}, s[24:27], 0 offen offset:{r*896}")
    for r in range(8):
        rowload(KR + 3 + r, 24, r)
    for r in range(8):
        rowload(VR + r, 28, r)
    for r in range(8):
        rowload(XR + r, 20, r)
    S = V.alloc(4, 4)
    a.I("s_waitcnt vmcnt(28)")
    for row in range(2):
        for j in range(4):
            c0 = "0" if j == 0 else f"v{S+2*row}"
            c1 = "0" if j == 0 else f"v{S+2*row+1}"
            a.I(f"v_dot2_f32_bf16 v{S+2*row}, v{ST+4*row+j}, s50, {c0}")
            a.I(f"v_dot2_f32_bf16 v{S+2*row+1}, v{ST+4*row+j}, v{ST+4*row+j}, {c1}")
    wave_reduce(a, [S, S + 1, S + 2, S + 3])
    M = V.alloc(2, 2); Vv = V.alloc(2, 2); O = V.alloc(4, 4)
    a.I("s_mov_b32 s47, 0x3b124925")
    a.I(f"v_mul_f32 v{M}, s47, v{S}")
    a.I(f"v_mul_f32 v{M+1}, s47, v{S+2}")
    a.I(f"v_mul_f32 v{Vv}, s47, v{S+1}")
    a.I(f"v_mul_f32 v{Vv+1}, s47, v{S+3}")
    a.I(f"v_fma_f32 v{Vv}, -v{M}, v{M}, v{Vv}")
    a.I(f"v_fma_f32 v{Vv+1}, -v{M+1}, v{M+1}, v{Vv+1}")
    a.I(f"v_max_f32 v{Vv}, 0, v{Vv}")
    a.I(f"v_max_f32 v{Vv+1}, 0, v{Vv+1}")
    rnd2(a, M, vt)
    rnd2(a, Vv, vt)
    a.I(f"v_add_f32 v{Vv}, 0x3727c5ac, v{Vv}")
    a.I(f"v_add_f32 v{Vv+1}, 0x3727c5ac, v{Vv+1}")
    rnd2(a, Vv, vt)
    a.I(f"v_sqrt_f32 v{Vv}, v{Vv}")
    a.I(f"v_sqrt_f32 v{Vv+1}, v{Vv+1}")
    rnd2(a, Vv, vt)
    a.I(f"v_rcp_f32 v{O+1}, v{Vv}")
    a.I(f"v_rcp_f32 v{O+3}, v{Vv+1}")
    a.I(f"v_mov_b32 v{O}, v{M}")
    a.I(f"v_mov_b32 v{O+2}, v{M+1}")
    a.I(f"v_lshrrev_b32 v{vt}, 6, v0")
    a.I(f"v_lshlrev_b32 v{vt}, 4, v{vt}")
    a.I("s_mov_b32 exec_lo, 0")
    a.I("s_mov_b32 exec_hi, 0x80000000")
    a.I(f"ds_write_b128 v{vt}, {vr(O,4)}")
    a.I("s_mov_b64 exec, -1")
    KU = V.alloc(22, 2); W = V.alloc(8, 2); P = V.alloc(2, 2); A = V.alloc(2, 2); VU = V.alloc(2, 2)
    KV = V.alloc(8)
    a.I("s_waitcnt vmcnt(16)")
    a.I(f"v_lshlrev_b32 v{W+0}, 16, v{SH}")
    a.I(f"v_lshlrev_b32 v{W+1}, 16, v{SH+2}")
    a.I(f"v_and_b32 v{W+2}, 0xffff0000, v{SH}")
    a.I(f"v_and_b32 v{W+3}, 0xffff0000, v{SH+2}")
    a.I(f"v_lshlrev_b32 v{W+4}, 16, v{SH+1}")
    a.I(f"v_lshlrev_b32 v{W+5}, 16, v{SH+3}")
    a.I(f"v_and_b32 v{W+6}, 0xffff0000, v{SH+1}")
    a.I(f"v_and_b32 v{W+7}, 0xffff0000, v{SH+3}")
    for r in range(11):
        unpack(a, KU + 2 * r, KU + 2 * r + 1, KR + r)
    a.I("s_waitcnt vmcnt(8)")
    for r in range(8):
        a.I(f"v_pk_mul_f32 {vr(A,2)}, {vr(KU+2*r,2)}, {vr(W+6,2)}")
        rnd2(a, A, vt)
        for t in range(1, 4):
            a.I(f"v_pk_mul_f32 {vr(P,2)}, {vr(KU+2*(r+t),2)}, {vr(W+2*(3-t),2)}")
            rnd2(a, P, vt2)
            a.I(f"v_pk_add_f32 {vr(A,2)}, {vr(A,2)}, {vr(P,2)}")
            rnd2(a, A, vt)
        unpack(a, VU, VU + 1, VR + r)
        a.I(f"v_pk_mul_f32 {vr(A,2)}, {vr(A,2)}, {vr(VU,2)}")
        a.I(f"v_cvt_pk_bf16_f32 v{KV+r}, v{A}, v{A+1}")
    U = V.alloc(8, 4)
    for j in range(4):
        a.I(f"v_perm_b32 v{U+j}, v{KV+6-2*j}, v{KV+7-2*j}, s51")
        a.I(f"v_perm_b32 v{U+4+j}, v{KV+6-2*j}, v{KV+7-2*j}, s52")
    a.I("s_sub_u32 s44, 2040, s3")
    a.I("s_lshl_b32 s44, s44, 1")
    vua = V.alloc()
    a.I(f"v_lshlrev_b32 v{vua}, 13, v0")
    a.I(f"v_cmp_gt_u32 vcc, 224, v0")
    a.I("s_and_saveexec_b64 s[48:49], vcc")
    a.I(f"buffer_store_dwordx4 {vr(U,4)}, v{vua}, s[36:39], s44 offen")
    a.I(f"v_add_u32 v{vt}, 4096, v{vua}")
    a.I(f"buffer_store_dwordx4 {vr(U+4,4)}, v{vt}, s[36:39], s44 offen")
    a.I("s_mov_b64 exec, s[48:49]")
    a.I("s_waitcnt lgkmcnt(0)")
    a.I("s_barrier")
    MR = V.alloc(16, 4)
    a.I(f"v_mov_b32 v{vt}, 0")
    for j in range(4):
        a.I(f"ds_read_b128 {vr(MR+4*j,4)}, v{vt} offset:{16*j}")
    a.I("s_waitcnt vmcnt(2) lgkmcnt(0)")
    XN = V.alloc(8)
    for r in range(8):
        unpack(a, A, A + 1, XR + r)
        a.I(f"v_sub_f32 v{A}, v{A}, v{MR+2*r}")
        a.I(f"v_sub_f32 v{A+1}, v{A+1}, v{MR+2*r}")
        rnd2(a, A, vt)
        a.I(f"v_mul_f32 v{A}, v{A}, v{MR+2*r+1}")
        a.I(f"v_mul_f32 v{A+1}, v{A+1}, v{MR+2*r+1}")
        a.I(f"v_cvt_pk_bf16_f32 v{XN+r}, v{A}, v{A+1}")
    X0 = V.alloc(16, 4)
    for r in range(8):
        a.I(f"v_perm_b32 v{X0+r}, v{XN+r}, v{XR+r}, s51")
        a.I(f"v_perm_b32 v{X0+8+r}, v{XN+r}, v{XR+r}, s52")
    a.I("s_lshl_b32 s44, s3, 2")
    a.I(f"v_lshlrev_b32 v{vua}, 14, v0")
    a.I(f"v_add_u32 v{vt}, 8192, v{vua}")
    a.I(f"v_cmp_gt_u32 vcc, 224, v0")
    a.I("s_and_saveexec_b64 s[48:49], vcc")
    a.I(f"buffer_store_dwordx4 {vr(X0,4)}, v{vua}, s[40:43], s44 offen")
    a.I(f"buffer_store_dwordx4 {vr(X0+4,4)}, v{vua}, s[40:43], s44 offen offset:16")
    a.I(f"buffer_store_dwordx4 {vr(X0+8,4)}, v{vt}, s[40:43], s44 offen")
    a.I(f"buffer_store_dwordx4 {vr(X0+12,4)}, v{vt}, s[40:43], s44 offen offset:16")
    a.I("s_endpgm")
    hi1 = V.hi
    a.label("K0_MOD")
    srd(a, 20, 12, 0, 896)
    srd(a, 24, 14, 0, 448 * 5376)
    srd(a, 28, 16, MOD, MOD_SZ)
    a.I("s_sub_u32 s3, s2, 256")
    a.I("s_lshl_b32 s44, s3, 8")
    V = Regs('v', 1, 256)
    vt = V.alloc(); vt2 = V.alloc(); vo = V.alloc(); vc = V.alloc(2, 2); vrg = V.alloc(); vcg = V.alloc()
    WM = V.alloc(28 * 4, 4)
    a.I(f"v_lshlrev_b32 v{vt}, 1, v0")
    a.I(f"buffer_load_ushort v{vc}, v{vt}, s[20:23], 0 offen")
    a.I(f"buffer_load_ushort v{vc+1}, v{vt}, s[20:23], 0 offen offset:512")
    a.I(f"v_lshrrev_b32 v{vrg}, 4, v0")
    a.I(f"v_and_b32 v{vcg}, 15, v0")
    a.I(f"v_mul_u32_u24 v{vo}, 5376, v{vrg}")
    a.I(f"v_lshl_add_u32 v{vo}, v{vcg}, 4, v{vo}")
    for i in range(28):
        a.I(f"buffer_load_dwordx4 {vr(WM+4*i,4)}, v{vo}, s[24:27], s44 offen")
        if i < 27:
            a.I("s_add_u32 s44, s44, 86016")
    a.I("s_waitcnt vmcnt(28)")
    a.I(f"v_lshlrev_b32 v{vc}, 16, v{vc}")
    a.I(f"v_lshlrev_b32 v{vc+1}, 16, v{vc+1}")
    E = V.alloc(2, 2)
    a.I(f"v_mul_f32 v{E}, 0xbfb8aa3b, v{vc}")
    a.I(f"v_mul_f32 v{E+1}, 0xbfb8aa3b, v{vc+1}")
    a.I(f"v_exp_f32 v{E}, v{E}")
    a.I(f"v_exp_f32 v{E+1}, v{E+1}")
    a.I(f"v_add_f32 v{E}, 1.0, v{E}")
    a.I(f"v_add_f32 v{E+1}, 1.0, v{E+1}")
    a.I(f"v_rcp_f32 v{E}, v{E}")
    a.I(f"v_rcp_f32 v{E+1}, v{E+1}")
    a.I(f"v_mul_f32 v{vc}, v{vc}, v{E}")
    a.I(f"v_mul_f32 v{vc+1}, v{vc+1}, v{E+1}")
    rnd2(a, vc, vt)
    a.I(f"v_mul_u32_u24 v{vt}, 28, v{vcg}")
    a.I(f"v_add_lshl_u32 v{vt}, v{vt}, v{vrg}, 2")
    a.I(f"ds_write_b32 v{vt}, v{vc}")
    a.I(f"v_cmp_gt_u32 vcc, 192, v0")
    a.I("s_and_saveexec_b64 s[48:49], vcc")
    a.I(f"ds_write_b32 v{vt}, v{vc+1} offset:64")
    a.I("s_mov_b64 exec, s[48:49]")
    a.I("s_waitcnt lgkmcnt(0)")
    a.I("s_barrier")
    SC = V.alloc(28, 4)
    a.I(f"v_mul_u32_u24 v{vt}, 112, v{vrg}")
    for j in range(7):
        a.I(f"ds_read_b128 {vr(SC+4*j,4)}, v{vt} offset:{16*j}")
    AC = V.alloc(8, 4); T = V.alloc(2, 2)
    for j in range(8):
        a.I(f"v_mov_b32 v{AC+j}, 0")
    a.I("s_waitcnt lgkmcnt(0)")
    for i in range(28):
        a.I(f"s_waitcnt vmcnt({27-i})")
        for j in range(4):
            unpack(a, T, T + 1, WM + 4 * i + j)
            a.I(f"v_fmac_f32 v{AC+2*j}, v{T}, v{SC+i}")
            a.I(f"v_fmac_f32 v{AC+2*j+1}, v{T+1}, v{SC+i}")
    a.I(f"v_lshlrev_b32 v{vt}, 9, v{vrg}")
    a.I(f"v_lshl_add_u32 v{vt}, v{vcg}, 5, v{vt}")
    a.I(f"ds_write_b128 v{vt}, {vr(AC,4)} offset:2048")
    a.I(f"ds_write_b128 v{vt}, {vr(AC+4,4)} offset:2064")
    a.I("s_waitcnt lgkmcnt(0)")
    a.I("s_barrier")
    a.I(f"v_cmp_gt_u32 vcc, 128, v0")
    a.I("s_and_saveexec_b64 s[48:49], vcc")
    a.I("s_cbranch_execz K0_END")
    a.I(f"v_lshlrev_b32 v{vt}, 2, v0")
    R = V.alloc(16, 2)
    for j in range(16):
        a.I(f"ds_read_b32 v{R+j}, v{vt} offset:{2048+512*j}")
    a.I("s_waitcnt lgkmcnt(0)")
    for j in range(1, 16):
        a.I(f"v_add_f32 v{R}, v{R}, v{R+j}")
    a.I(f"v_cvt_pk_bf16_f32 v{R}, v{R}, v{R}")
    a.I(f"v_lshlrev_b32 v{R}, 16, v{R}")
    a.I("s_lshl_b32 s44, s3, 9")
    a.I(f"buffer_store_dword v{R}, v{vt}, s[28:31], s44 offen")
    a.label("K0_END")
    a.I("s_endpgm")
    return max(hi1, V.hi)

def main():
    a = Asm()
    hdr = open("cdna_kernels/" + NAME + ".s.ref").read().split("; Override launch")[0]
    launches = [("k0_kernel", 277, 256, 10240)]
    import gen_rest
    body = Asm()
    v0 = gen_k0(body)
    kds = [kd("k0_kernel", v0)]
    gen_rest.gen_all(body, launches, kds)
    out = hdr
    for (n, g, b, l) in launches:
        out += f"; @launch kernel={n} grid=({g},1,1) block=({b},1,1) lds={l}\n"
    out += '.amdgcn_target "amdgcn-amd-amdhsa--gfx950"\n.text\n'
    out += body.text()
    out += '.section .rodata,"a"\n' + "".join(kds)
    open(sys.argv[1] if len(sys.argv) > 1 else "cdna_kernels/" + NAME + ".s", "w").write(out)

if __name__ == "__main__":
    main()
```
